```python
import torch

def _softmax(x, axis=-1):
    return torch.softmax(x, dim=axis)
def _gelu(x):
    return torch.nn.functional.gelu(x, approximate="tanh")
def _silu(x):
    return torch.nn.functional.silu(x)
def _sigmoid(x):
    return torch.sigmoid(x)
def _layernorm(x, axis=-1, eps=1e-5):
    m = x.mean(dim=axis, keepdim=True)
    v = x.var(dim=axis, keepdim=True, unbiased=False)
    return (x - m) / torch.sqrt(v + eps)
def _scatter_add(tgt, idx, src, axis=0):
    return tgt.clone().index_add_(axis, idx, src)
def _segment_sum(src, seg, n):
    out = torch.zeros((n,) + src.shape[1:], dtype=src.dtype)
    return out.index_add_(0, seg, src)
def _pad(x, pw):
    flat = tuple(v for pair in reversed(pw) for v in pair)
    return torch.nn.functional.pad(x, flat)

kernel_name = 'concat_heads__grouped_kv_mqa__ssm_conv_s4d__prompt'

def setup_inputs():

    _w = (lambda a: (lambda t: t.to(torch.bfloat16) if t.is_floating_point() else t)(torch.as_tensor(a)))
    def _A_setup():
        B, S, D, H = 1, 2048, 640, 32
        Dh = D // H
        return {
            "x": _w((lambda *s: torch.randn(*s, dtype=torch.bfloat16) * 0.05)(B, S, D)),
            "wq": _w((lambda *s: torch.randn(*s, dtype=torch.bfloat16) * 0.8)(D, H * Dh)),
            "wk": _w((lambda *s: torch.randn(*s, dtype=torch.bfloat16) * 0.8)(D, Dh)),
            "wv": _w((lambda *s: torch.randn(*s, dtype=torch.bfloat16) * 0.05)(D, Dh)),
            "wo": _w((lambda *s: torch.randn(*s, dtype=torch.bfloat16) * 0.05)(H * Dh, D)),
        }
    _A_in = _A_setup()

    def _B_setup():
        Bsz, L, D, N = 1, 2048, 640, 192
        return {
            "u": _w((lambda *s: torch.randn(*s, dtype=torch.bfloat16) * 0.05)(Bsz, L, D)),
            "log_A_real": _w((lambda *s: torch.randn(*s, dtype=torch.bfloat16) * 6.4)(D, N) * 0.5),
            "A_imag": _w((lambda *s: torch.randn(*s, dtype=torch.bfloat16) * 0.05)(D, N) * 3.14),
            "C_real": _w((lambda *s: torch.randn(*s, dtype=torch.bfloat16) * 0.05)(D, N) / N ** 0.5),
            "C_imag": _w((lambda *s: torch.randn(*s, dtype=torch.bfloat16) * 0.05)(D, N) / N ** 0.5),
            "log_dt": _w((lambda *s: torch.randn(*s, dtype=torch.bfloat16) * 0.05)(D) * 0.5 - 4.0),
            "D_skip": _w((lambda *s: torch.randn(*s, dtype=torch.bfloat16) * 0.05)(D)),
        }
    _B_in = _B_setup()

    return {
        "A_x": _A_in["x"],
        "A_wq": _A_in["wq"],
        "A_wk": _A_in["wk"],
        "A_wv": _A_in["wv"],
        "A_wo": _A_in["wo"],
        "B_u": _B_in["u"],
        "B_log_A_real": _B_in["log_A_real"],
        "B_A_imag": _B_in["A_imag"],
        "B_C_real": _B_in["C_real"],
        "B_C_imag": _B_in["C_imag"],
        "B_log_dt": _B_in["log_dt"],
        "B_D_skip": _B_in["D_skip"],
    }

def reference(A_x, A_wq, A_wk, A_wv, A_wo, B_u, B_log_A_real, B_A_imag, B_C_real, B_C_imag, B_log_dt, B_D_skip):
    def _A_ref(x, wq, wk, wv, wo):
        B, S, D = x.shape
        H = 32
        Dh = D // H
        q = (lambda x, *d: x.permute(*d))((x @ wq).reshape(B, S, H, Dh), 0, 2, 1, 3)
        k = x @ wk
        v = x @ wv
        scores = torch.einsum("bhqd,bkd->bhqk", q, k) * (Dh ** -0.5)
        p = _softmax(scores, axis=-1)
        o = torch.einsum("bhqk,bkd->bhqd", p, v)
        return (lambda x, *d: x.permute(*d))(o, 0, 2, 1, 3).reshape(B, S, H * Dh) @ wo

    def _B_ref(u, log_A_real, A_imag, C_real, C_imag, log_dt, D_skip):
        L = u.shape[1]
        dt = torch.exp(log_dt)
        A = -torch.exp(log_A_real) + 1j * A_imag
        C = (C_real + 1j * C_imag) * dt[:, None]
        pos = (lambda x, dt: x.to(dt))(torch.arange(L), log_dt.dtype)
        P = torch.exp((A * dt[:, None])[:, :, None] * pos[None, None, :])
        K = 2.0 * torch.einsum("dn,dnl->dl", C, P).real
        L2 = 2 * L
        u_t = (lambda x, *d: x.permute(*d))(u, 0, 2, 1)
        Kf = (lambda x, *a, **k: torch.fft.rfft(x.float(), *a, **k))(K, L2)
        Uf = (lambda x, *a, **k: torch.fft.rfft(x.float(), *a, **k))(u_t, L2)
        y = (lambda x, *a, **k: torch.fft.irfft(x, *a, **k).to(torch.bfloat16))(Uf * Kf[None, :, :], L2)[:, :, :L]
        y = (lambda x, *d: x.permute(*d))(y, 0, 2, 1)
        return y + u * D_skip[None, None, :]

    a = _A_ref(A_x, A_wq, A_wk, A_wv, A_wo)
    b = _B_ref(B_u, B_log_A_real, B_A_imag, B_C_real, B_C_imag, B_log_dt, B_D_skip)
    return torch.concatenate([a, b], axis=-1)
```

```python
import re

class Prog:
    def __init__(self):
        self.lines = []
        self._uid = 0
    def __call__(self, s):
        for ln in s.split("\n"):
            ln = ln.strip()
            if ln:
                self.lines.append(ln)
    def label(self, name):
        self.lines.append(name + ":")
    def uid(self, base):
        self._uid += 1
        return f"L_{base}_{self._uid}"
    def extend(self, other):
        self.lines.extend(other.lines)

def vr(a, n=1):
    return f"v{a}" if n == 1 else f"v[{a}:{a+n-1}]"
def sr(a, n=1):
    return f"s{a}" if n == 1 else f"s[{a}:{a+n-1}]"

_REG = re.compile(r"^(-|\|)?(v|s|a)(\d+)\|?$")
_RNG = re.compile(r"^(-|\|)?(v|s|a)\[(\d+):(\d+)\]\|?$")
def regs_of(op):
    op = op.strip()
    if op.startswith("abs(") and op.endswith(")"):
        op = op[4:-1]
    if op.startswith("-abs(") and op.endswith(")"):
        op = op[5:-1]
    m = _REG.match(op)
    if m:
        return {(m.group(2), int(m.group(3)))}
    m = _RNG.match(op)
    if m:
        return {(m.group(2), i) for i in range(int(m.group(3)), int(m.group(4)) + 1)}
    if op == "vcc":
        return {("s", "vcc")}
    if op in ("vcc_lo", "vcc_hi"):
        return {("s", "vcc")}
    if op == "m0":
        return {("s", "m0")}
    if op in ("exec", "exec_lo", "exec_hi"):
        return {("s", "exec")}
    return set()

TRANS = ("v_exp_", "v_log_", "v_rcp_", "v_rsq_", "v_sqrt_", "v_sin_", "v_cos_")
def mfma_passes(mn):
    if "32x32x64" in mn: return 16
    if "32x32x4_2b" in mn or "32x32x4bf16" in mn: return 16
    if "32x32" in mn: return 8
    if "16x16x4" in mn: return 8
    if "16x16" in mn: return 4
    if "4x4" in mn: return 2
    raise ValueError(mn)

class Ins:
    __slots__ = ("text", "mn", "kind", "vw", "vrd", "sw", "srd", "A", "B", "C", "D", "passes", "states", "dpp", "target", "data", "lds_m0")
    def __init__(self, text):
        self.text = text
        t = text.split(";")[0].strip()
        parts = t.split(None, 1)
        self.mn = mn = parts[0]
        rest = parts[1] if len(parts) > 1 else ""
        ops = [o.strip() for o in re.split(r",(?![^\[]*\])", rest)] if rest else []
        mods = ""
        if ops:
            last = ops[-1].split(None, 1)
            ops[-1] = last[0]
            mods = last[1] if len(last) > 1 else ""
        self.vw = set(); self.vrd = set(); self.sw = set(); self.srd = set()
        self.A = self.B = self.C = self.D = set(); self.passes = 0
        self.states = 1; self.dpp = False; self.target = None; self.data = set(); self.lds_m0 = False
        R = [regs_of(o) for o in ops]
        def split(rs):
            v = {r for r in rs if r[0] in "va"}; s = {r for r in rs if r[0] == "s"}
            return v, s
        if mn == "s_nop":
            self.kind = "nop"; self.states = int(ops[0], 0) + 1
        elif mn.startswith("v_mfma") or mn.startswith("v_smfmac"):
            self.kind = "mfma"; self.passes = mfma_passes(mn)
            self.D = R[0]; self.A = R[1]; self.B = R[2]
            if mn.startswith("v_smfmac"):
                self.C = R[0]; self.B = R[2] | R[3]
            else:
                self.C = R[3]
            self.vw = set(self.D); self.vrd = self.A | self.B | self.C
        elif mn.startswith("v_"):
            self.kind = "valu"
            self.dpp = ("_dpp" in mn) or ("row_" in mods) or ("quad_perm" in mods) or ("wave_" in mods)
            if mn.startswith("v_cmp"):
                self.sw = set(R[0]); srcs = R[1:]
            elif mn.startswith("v_readfirstlane") or mn.startswith("v_readlane"):
                self.sw = set(R[0]); srcs = R[1:]
            elif mn.startswith("v_permlane") and "swap" in mn:
                self.vw = R[0] | R[1]; srcs = R
            elif re.match(r"v_(add|sub|subrev)_co_|v_(addc|subb|subbrev)_co_|v_div_scale|v_mad_u64|v_mad_i64", mn):
                self.vw = set(R[0]); self.sw = set(R[1]); srcs = R[2:]
            else:
                self.vw = set(R[0]); srcs = R[1:]
                if re.match(r"v_(fmac|pk_fmac|mac|dot2c|dot4c|writelane)", mn) or self.dpp:
                    srcs = R
            for r in srcs:
                v, s = split(r); self.vrd |= v; self.srd |= s
        elif mn.startswith("ds_"):
            self.kind = "ds"
            if re.match(r"ds_(read|bpermute|permute|swizzle)", mn) or "_rtn" in mn:
                self.vw = set(R[0]); srcs = R[1:]
            else:
                srcs = R
            for r in srcs:
                v, s = split(r); self.vrd |= v
            if "addtid" in mn: self.lds_m0 = True
        elif mn.startswith("buffer_") or mn.startswith("global_"):
            self.kind = "vmem"
            isl = (" lds" in " " + mods) or ("_lds_" in mn)
            self.lds_m0 = isl
            if mn in ("buffer_wbl2", "buffer_inv"):
                pass
            elif "load" in mn and not isl:
                self.vw = set(R[0])
                for r in R[1:]:
                    v, s = split(r); self.vrd |= v; self.srd |= s
            else:
                for r in R:
                    v, s = split(r); self.vrd |= v; self.srd |= s
                if "store" in mn and ("x4" in mn or "x3" in mn):
                    self.data = R[0] if mn.startswith("buffer_") else R[1]
        elif mn.startswith("s_"):
            self.kind = "salu"
            if mn.startswith("s_cbranch") or mn == "s_branch":
                self.kind = "branch"; self.target = ops[0]
            elif mn in ("s_endpgm", "s_barrier", "s_waitcnt", "s_sleep", "s_setprio"):
                pass
            elif mn.startswith("s_cmp") or mn.startswith("s_bitcmp"):
                for r in R: self.srd |= r
            else:
                if R: self.sw = set(R[0])
                for r in R[1:]: self.srd |= r
                if "saveexec" in mn: self.sw |= {("s", "exec")}
        else:
            raise ValueError("unknown instruction: " + text)

XDL_VALU = {2: 5, 4: 8, 8: 12, 16: 20}
XDL_SRCC_OVL = {2: 4, 4: 6, 8: 10, 16: 18}
XDL_WAR_C = {2: 1, 4: 3, 8: 7, 16: 15}

def need(p, c):
    n = 0
    if p.kind == "valu":
        if c.kind == "mfma" and (p.vw & c.vrd): n = max(n, 2)
        if c.kind == "valu":
            if p.sw & c.srd:
                n = max(n, 4 if c.mn.startswith(("v_readlane", "v_writelane")) else 2)
            if (p.vw & c.vrd):
                if c.mn.startswith(("v_readfirstlane", "v_readlane")): n = max(n, 1)
                if c.dpp or c.mn.startswith("v_permlane"): n = max(n, 2)
                if p.mn.startswith(TRANS) and not c.mn.startswith(TRANS): n = max(n, 1)
                if "sdwa" in p.mn: n = max(n, 1)
        if p.mn.startswith("v_dot") and c.kind in ("valu", "mfma", "ds", "vmem") and (p.vw & (c.vrd | c.vw)):
            n = max(n, 3)
        if c.kind == "vmem" and (p.sw & c.srd): n = max(n, 5)
        if c.kind in ("vmem", "ds") and p.mn.startswith(TRANS) and (p.vw & c.vrd): n = max(n, 1)
    elif p.kind == "mfma":
        if c.kind == "mfma":
            if p.D & (c.A | c.B): n = max(n, XDL_VALU[p.passes])
            if p.D & c.C:
                if p.D == c.C and p.passes == c.passes:
                    n = max(n, 2 if p.passes == 2 else 0)
                else:
                    n = max(n, XDL_SRCC_OVL[p.passes])
            elif p.D & c.D:
                n = max(n, XDL_SRCC_OVL[p.passes]) if p.D != c.D or p.passes != c.passes else n
        elif c.kind in ("valu", "ds", "vmem"):
            if p.D & (c.vrd | c.vw): n = max(n, XDL_VALU[p.passes])
            if c.kind == "valu" and (p.C & c.vw): n = max(n, XDL_WAR_C[p.passes])
    elif p.kind == "salu":
        if ("s", "m0") in p.sw and c.lds_m0: n = max(n, 1)
    elif p.kind == "vmem":
        if p.data and (p.data & c.vw): n = max(n, 2 if c.kind == "valu" else 1)
    return n

def hazard_pass_full(lines):
    items = []
    labels = {}
    for i, ln in enumerate(lines):
        if ln.endswith(":") and " " not in ln:
            labels[ln[:-1]] = len(items)
        elif ln.startswith((".", ";")):
            continue
        else:
            items.append((i, Ins(ln)))
    preds = [[] for _ in items]
    for k, (i, ins) in enumerate(items):
        if k + 1 < len(items) and ins.mn not in ("s_branch", "s_endpgm"):
            preds[k + 1].append(k)
        if ins.kind == "branch":
            if ins.target not in labels:
                raise ValueError("unknown label " + ins.target)
            if labels[ins.target] < len(items):
                preds[labels[ins.target]].append(k)
    pad = [0] * len(items)
    why = {}
    changed = True
    while changed:
        changed = False
        for k, (i, c) in enumerate(items):
            if c.kind in ("nop", "branch"): continue
            worst = 0; who = None
            stack = [(p, pad[k]) for p in preds[k]]
            seen = {}
            while stack:
                p, dist = stack.pop()
                if dist >= 20 or seen.get(p, 99) <= dist: continue
                seen[p] = dist
                ins = items[p][1]
                n = need(ins, c)
                if n - dist > worst:
                    worst = n - dist; who = ins.text
                for q in preds[p]:
                    stack.append((q, dist + ins.states + pad[p]))
            if worst > 0:
                pad[k] += worst; why[k] = who; changed = True
    out = list(lines)
    report = []
    for k in range(len(items) - 1, -1, -1):
        if pad[k]:
            i = items[k][0]
            n = pad[k]
            ins = []
            while n > 0:
                m = min(n, 16); ins.append(f"s_nop {m-1}"); n -= m
            out[i:i] = ins
            report.append((pad[k], why[k], items[k][1].text))
    report.reverse()
    return out, report


class DsTracker:
    def __init__(self, prog):
        self.p = prog; self.q = []
    def issue(self, text, tag=None):
        self.p(text); self.q.append(tag)
        assert len(self.q) <= 15 or True
    def need(self, *tags):
        last = -1
        for i, t in enumerate(self.q):
            if t in tags: last = i
        if last < 0: return
        n = len(self.q) - 1 - last
        assert n <= 15
        self.p(f"s_waitcnt lgkmcnt({n})")
        self.q = self.q[last + 1:]
    def drain(self):
        self.p("s_waitcnt lgkmcnt(0)"); self.q = []
```

```python
import sys, struct, math
from asmlib import Prog, vr, sr, hazard_pass_full, DsTracker

KNAME = "concat_heads__grouped_kv_mqa__ssm_conv_s4d__prompt_kernel"

def f2u(x):
    return struct.unpack("<I", struct.pack("<f", x))[0]
def hx(x):
    return "0x%08x" % (x & 0xffffffff)

class Cfg:
    stamps = False
    force_fallback = False
    prefetch = True
    mpos = (2, 5, 8, 12)
    spin = 200000
    def __init__(self, **kw):
        for k, v in kw.items():
            assert hasattr(Cfg, k), k
            setattr(self, k, v)

WS_G = 0
WS_KVFLAG = 4096
WS_OFLAG = 8192
WS_KVF = 65536
WS_O = 0x100000
WS_STAMP = 0x800000
WS_SIZE = 0x1000000
NONCE_ADD = 0x9E3779B9

L_W = 0
L_T = 25600
T_PITCH = 272
T_SIZE = 32 * T_PITCH
L_PERSIST = 60416
L_WQ = 61440
L_WO = 61440
L_QX = 0
QX_PITCH = 168
L_KV = 11264
KV_TILE = 3072
KV_SLOT = 4 * KV_TILE
L_KC = 0
KC_PITCH = 8320
KC_COPY1 = 4160
L_UT = 33280
UT_PITCH = 4608
LDS_TOTAL = 163840

SX, SWQ, SWKV, SWO, SU, SOUT, SWS = 4, 8, 12, 16, 20, 24, 28
SLA, SAI, SCR, SCI, SLD, SDS = 32, 36, 40, 44, 48, 52
sW, sQB, sHG, sSSM, sCH0, sNONCE, sKMAX = 56, 57, 58, 59, 60, 61, 62
sT0, sT1, sT2, sT3, sT4, sT5 = 63, 64, 65, 66, 67, 68
sCNT = 69
sSEL_LO, sSEL_HI = 70, 71
sC0, sC1, sC2 = 72, 73, 74
sEX = 76
sSTAMP = 78

vLANE = 0
vQ16, vQ8, vIDX, vKA, vK8A, vVA, vDMA = 4, 8, 10, 11, 12, 13, 14
vWD = 15
vK16, vK8, vV0, vV1 = 20, 24, 28, 32
vSA, vSB, vO = 36, 52, 68
vKD, vDSK, vG, vU = 84, 100, 101, 104
vX = 120
vAF = 200
vT = 224

CSCALE = math.log2(math.e) / math.sqrt(20.0)


class Gen:
    def __init__(self, cfg):
        self.c = cfg
        self.p = Prog()
        self.nstamp = 0

    def stamp(self, i):
        if self.c.stamps:
            self.p(f"s_memrealtime s[{sSTAMP+2*i}:{sSTAMP+2*i+1}]\ns_waitcnt lgkmcnt(0)")

    def stamps_out(self):
        if not self.c.stamps:
            return
        p = self.p
        p(f"""
        s_lshl_b32 s{sT0}, s2, 3
        s_add_u32 s{sT0}, s{sT0}, s{sW}
        s_lshl_b32 s{sT0}, s{sT0}, 6
        s_add_u32 s{sT0}, s{sT0}, {WS_STAMP}
        v_mov_b32 v1, 0
        """)
        for q in range(3):
            for j in range(4):
                p(f"v_mov_b32 v{vT+j}, s{sSTAMP+2*(4*q+j)}")
            p(f"buffer_store_dwordx4 v[{vT}:{vT+3}], v1, {sr(SWS,4)}, s{sT0} offen offset:{16*q}")
            p("s_waitcnt vmcnt(0)")

    def cmul(self, dst, x, w, tmp):
        return [f"v_pk_mul_f32 {vr(tmp,2)}, {vr(x,2)}, {vr(w,2)} op_sel:[0,0] op_sel_hi:[1,0]",
                f"v_pk_fma_f32 {vr(dst,2)}, {vr(x,2)}, {vr(w,2)}, {vr(tmp,2)} op_sel:[1,1,0] op_sel_hi:[0,1,1] neg_lo:[1,0,0]"]

    def dma(self, srd, voff, soff, m0, off=0, sc1=False):
        self.p(m0)
        o = f" offset:{off}" if off else ""
        self.p(f"buffer_load_dwordx4 v{voff}, {sr(srd,4)}, {soff} offen{o}{' sc1' if sc1 else ''} lds")

    def div10(self, dst_row, dst_seg, idx, tmp):
        p = self.p
        p(f"""
        v_mul_u32_u24 v{dst_row}, s{sC0}, v{idx}
        v_lshrrev_b32 v{dst_row}, 19, v{dst_row}
        v_mul_u32_u24 v{tmp}, 10, v{dst_row}
        v_sub_u32 v{dst_seg}, v{idx}, v{tmp}
        """)

    def entry(self):
        p = self.p
        p(f"""
        s_cmp_ge_u32 s2, 256
        s_cbranch_scc1 L_end
        s_load_dwordx16 s[64:79], s[0:1], 0
        s_load_dwordx8 s[80:87], s[0:1], 64
        s_load_dwordx4 s[88:91], s[0:1], 96
        s_load_dwordx2 s[92:93], s[0:1], 112
        """)
        if self.c.stamps:
            p("s_memrealtime s[100:101]")
        p(f"""
        v_lshrrev_b32 v1, 6, v0
        v_and_b32 v{vLANE}, 63, v0
        v_readfirstlane_b32 s{sW}, v1
        s_and_b32 s{sT0}, s2, 7
        s_lshr_b32 s{sKMAX}, s2, 3
        s_and_b32 s{sQB}, s{sKMAX}, 3
        s_lshl_b32 s{sNONCE}, s{sT0}, 2
        s_add_u32 s{sQB}, s{sQB}, s{sNONCE}
        s_lshr_b32 s{sHG}, s{sKMAX}, 2
        s_mul_i32 s{sCH0}, s{sT0}, 20
        s_add_u32 s{sCH0}, s{sCH0}, s{sKMAX}
        s_lshl_b32 s{sCH0}, s{sCH0}, 2
        s_cmp_lt_u32 s{sKMAX}, 20
        s_cselect_b32 s{sSSM}, 1, 0
        v_lshlrev_b32 v{vDMA}, 4, v{vLANE}
        """)
        if self.c.prefetch:
            p(f"""
            s_getpc_b64 s[94:95]
            L_pc:
            s_sub_u32 s94, s94, L_pc-L_start
            s_subb_u32 s95, s95, 0
            s_and_b32 s{sT0}, s{sKMAX}, 7
            s_lshl_b32 s{sT0}, s{sT0}, 3
            s_add_u32 s{sT0}, s{sT0}, s{sW}
            s_lshl_b32 s{sT0}, s{sT0}, 10
            v_add_u32 v1, s{sT0}, v{vDMA}
            v_min_u32 v1, L_codeend-L_start-16, v1
            global_load_dwordx4 v[{vT+28}:{vT+31}], v1, s[94:95]
            """)
        p(f"""
        s_mul_i32 s{sT0}, s{sW}, 3200
        v_add_u32 v1, s{sT0}, v{vDMA}
        s_mov_b32 m0, s{sT0}
        v_mov_b32 v2, 0
        s_bitcmp1_b32 s{sHG}, 0
        s_waitcnt lgkmcnt(0)
        s_cselect_b32 s{SWKV}, s70, s68
        s_cselect_b32 s{SWKV+1}, s71, s69
        s_mov_b32 s{SWKV+2}, 25600
        s_mov_b32 s{SWKV+3}, 0x20000
        s_mov_b32 s{SWS}, s92
        s_mov_b32 s{SWS+1}, s93
        s_mov_b32 s{SWS+2}, {WS_SIZE}
        s_mov_b32 s{SWS+3}, 0x20000
        buffer_load_dwordx4 v1, {sr(SWKV,4)}, 0 offen lds
        buffer_load_dwordx4 v1, {sr(SWKV,4)}, 0 offen offset:1024 lds
        buffer_load_dwordx4 v1, {sr(SWKV,4)}, 0 offen offset:2048 lds
        s_mov_b64 exec, 0xff
        buffer_load_dwordx4 v1, {sr(SWKV,4)}, 0 offen offset:3072 lds
        s_mov_b64 exec, -1
        buffer_load_dword v{vG}, v2, {sr(SWS,4)}, 0 offen sc1
        """)
        def srd(d, lo, size):
            p(f"s_mov_b32 s{d}, s{lo}\ns_mov_b32 s{d+1}, s{lo+1}\ns_mov_b32 s{d+2}, {size}\ns_mov_b32 s{d+3}, 0x20000")
        srd(SX, 64, 2621440)
        srd(SWQ, 66, 819200)
        srd(SLA, 76, 245760)
        srd(SAI, 78, 245760)
        srd(SCR, 80, 245760)
        srd(SCI, 82, 245760)
        srd(SLD, 84, 1280)
        srd(SDS, 86, 1280)
        srd(SWO, 72, 819200)
        srd(SU, 74, 2621440)
        srd(SOUT, 88, 5242880)
        if self.c.stamps:
            p(f"s_mov_b32 s{sSTAMP}, s100\ns_mov_b32 s{sSTAMP+1}, s101")
        p(f"""
        s_mov_b32 s{sC0}, 52429
        s_cmp_ge_u32 s{sW}, 4
        s_cbranch_scc1 L_frontB
        """)

    def frontA(self):
        p = self.p
        p(f"""
        s_lshl_b32 s{sT0}, s{sQB}, 2
        s_add_u32 s{sT0}, s{sT0}, s{sW}
        s_mul_i32 s{sT0}, s{sT0}, 20480
        v_and_b32 v1, 15, v{vLANE}
        v_mul_u32_u24 v1, 1280, v1
        v_lshrrev_b32 v2, 4, v{vLANE}
        v_lshl_add_u32 v1, v2, 4, v1
        """)
        for s in range(20):
            p(f"buffer_load_dwordx4 {vr(vX+4*s,4)}, v1, {sr(SX,4)}, s{sT0} offen offset:{64*s}")
        p(f"""
        v_lshrrev_b32 v2, 4, v{vLANE}          ; g
        v_bfe_u32 v3, v{vLANE}, 2, 2           ; r
        v_and_b32 v1, 3, v{vLANE}              ; c4
        v_lshlrev_b32 v1, 3, v1
        v_lshl_add_u32 v{vT}, v2, 3, v3        ; 8g+r
        v_mul_u32_u24 v{vT}, 40, v{vT}
        v_add_u32 v{vT+1}, v{vT}, v1
        v_lshrrev_b32 v{vT}, 1, v2
        v_and_b32 v2, 1, v2
        v_lshlrev_b32 v{vT}, 4, v{vT}
        v_lshl_add_u32 v{vT}, v2, 2, v{vT}
        v_add_u32 v{vT}, v{vT}, v3             ; 16(g/2)+4(g%2)+r
        v_mul_u32_u24 v{vT}, 160, v{vT}
        v_add_u32 v{vT}, v{vT}, v1
        v_add_u32 v{vT+2}, {L_WQ}, v{vT}
        v_add_u32 v{vT+3}, {L_WQ+61440}, v{vT} ; steps 12..19
        s_branch L_frontA1
        """)

    def frontA1(self):
        p = self.p
        p.label("L_frontA1")
        p(f"""
        s_cmp_lg_u32 s{sW}, 0
        s_cbranch_scc1 L_noinit
        v_mov_b32 v1, {L_PERSIST}
        v_mov_b32 v2, 0
        v_mov_b32 v3, 0
        ds_write_b64 v1, v[2:3]
        s_waitcnt lgkmcnt(0)
        L_noinit:
        s_waitcnt vmcnt(20)
        v_readfirstlane_b32 s{sNONCE}, v{vG}
        s_barrier
        s_add_u32 s{sNONCE}, s{sNONCE}, {hx(NONCE_ADD)}
        """)
        self.stamp(1)
        p(f"""
        s_lshr_b32 s{sT0}, s{sHG}, 1
        s_cmp_lg_u32 s{sT0}, s{sW}
        s_cbranch_scc1 L_nokv
        s_setprio 2
        s_waitcnt vmcnt(0)
        s_bitcmp1_b32 s{sHG}, 0
        s_cbranch_scc1 L_vproj
        """)
        self.kvproj(False)
        p("s_branch L_kvdone")
        p.label("L_vproj")
        self.kvproj(True)
        p.label("L_kvdone")
        p("s_setprio 0")
        self.stamp(2)
        p("s_branch L_kvjoin")
        p.label("L_nokv")
        p("s_waitcnt vmcnt(0)")
        p.label("L_kvjoin")
        acc = vSA
        for mu in range(5):
            for r in range(4):
                p(f"v_mov_b32 v{acc+4*mu+r}, 0")
        p("s_barrier")
        self.stamp(3)
        self.qstage(0, 8, acc)
        p(f"""
        s_lshr_b32 s{sT0}, s{sHG}, 1
        s_cmp_lg_u32 s{sT0}, s{sW}
        s_cbranch_scc1 L_noflag
        s_waitcnt vmcnt(0)
        s_lshl_b32 s{sT0}, s{sQB}, 3
        s_add_u32 s{sT0}, s{sT0}, s{sHG}
        s_lshl_b32 s{sT0}, s{sT0}, 3
        s_add_u32 s{sT0}, s{sT0}, {WS_KVFLAG}
        v_mov_b32 v2, s{sNONCE}
        v_mov_b32 v3, s{sKMAX}
        v_mov_b32 v1, 0
        s_mov_b64 exec, 1
        buffer_store_dwordx2 v[2:3], v1, {sr(SWS,4)}, s{sT0} offen sc1
        s_mov_b64 exec, -1
        L_noflag:
        """)
        self.stamp(4)
        p("s_barrier")
        self.qstage(8, 16, acc)
        p("s_barrier")
        self.stamp(5)
        self.qstage(16, 20, acc)
        p(f"""
        v_and_b32 v1, 15, v{vLANE}
        s_lshl_b32 s{sT0}, s{sW}, 4
        v_add_u32 v1, s{sT0}, v1
        v_mul_u32_u24 v1, {QX_PITCH}, v1
        v_lshrrev_b32 v2, 4, v{vLANE}
        v_lshl_add_u32 v1, v2, 3, v1
        """)
        for mu in range(5):
            p(f"""
            v_cvt_pk_bf16_f32 v{vAF+2*mu}, v{acc+4*mu}, v{acc+4*mu+1}
            v_cvt_pk_bf16_f32 v{vAF+2*mu+1}, v{acc+4*mu+2}, v{acc+4*mu+3}
            ds_write_b64 v1, {vr(vAF+2*mu,2)} offset:{L_QX+32*mu}
            """)
        p("s_waitcnt lgkmcnt(0)\ns_barrier")
        self.stamp(6)

    def kvproj(self, isV):
        p = self.p
        a0, a1 = vSB + 8, vSB + 12
        for r in range(8):
            p(f"v_mov_b32 v{a0+r}, 0")
        d = DsTracker(p)
        def rd(s):
            b = vAF + 8 * (s % 2)
            b = (vAF, vAF + 8, vT + 8)[s % 3]
            for t in range(2):
                for h in range(2):
                    d.issue(f"ds_read_b64_tr_b16 {vr(b+4*t+2*h,2)}, v{vT+1} offset:{L_W + s*1280 + h*160 + t*32}", (s, t))
            return b
        bufs = {}
        bufs[0] = rd(0); bufs[1] = rd(1)
        for s in range(20):
            if s + 2 < 20:
                bufs[s+2] = rd(s + 2)
            for t in range(2):
                d.need((s, t))
                w = vr(bufs[s] + 4*t, 4); x = vr(vX + 4*s, 4); a = vr((a0, a1)[t], 4)
                if isV:
                    p(f"v_mfma_f32_16x16x32_bf16 {a}, {x}, {w}, {a}")
                else:
                    p(f"v_mfma_f32_16x16x32_bf16 {a}, {w}, {x}, {a}")
        p(f"""
        s_lshl_b32 s{sT0}, s{sQB}, 2
        s_add_u32 s{sT0}, s{sT0}, s{sW}
        s_and_b32 s{sT1}, s{sT0}, 1
        s_lshr_b32 s{sT0}, s{sT0}, 1
        s_mul_i32 s{sT0}, s{sT0}, {KV_TILE}
        s_add_u32 s{sT0}, s{sT0}, {WS_KVF}
        v_and_b32 v1, 15, v{vLANE}
        v_lshrrev_b32 v2, 4, v{vLANE}
        """)
        t = vT + 8
        if not isV:
            p(f"""
            s_lshl_b32 s{sT1}, s{sT1}, 4
            v_lshl_add_u32 v3, v2, 5, v1
            v_add_u32 v3, s{sT1}, v3
            v_lshlrev_b32 v{t+8}, 4, v3
            v_lshlrev_b32 v{t+9}, 3, v3
            s_mov_b32 s{sT2}, {hx(f2u(CSCALE))}
            v_cmp_eq_u32 vcc, 0, v2
            """)
            for r in range(8):
                p(f"v_mul_f32 v{a0+r}, s{sT2}, v{a0+r}")
            p(f"""
            v_mul_f32 v{t+10}, v{a1}, v{a1}
            v_fmac_f32 v{t+10}, v{a1+1}, v{a1+1}
            v_fmac_f32 v{t+10}, v{a1+2}, v{a1+2}
            v_fmac_f32 v{t+10}, v{a1+3}, v{a1+3}
            v_cndmask_b32 v{t+10}, 0, v{t+10}, vcc
            v_cvt_pk_bf16_f32 v{t}, v{a0}, v{a0+1}
            v_cvt_pk_bf16_f32 v{t+1}, v{a0+2}, v{a0+3}
            v_cvt_pk_bf16_f32 v{t+4}, v{a1}, v{a1+1}
            v_cvt_pk_bf16_f32 v{t+5}, v{a1+2}, v{a1+3}
            v_mov_b32 v{t+2}, v{t}
            v_mov_b32 v{t+3}, v{t+1}
            v_mov_b32 v{t+6}, 0x3f803f80
            v_mov_b32 v{t+7}, 0x00003f80
            v_cndmask_b32 v{t+4}, v{t+6}, v{t+4}, vcc
            v_cndmask_b32 v{t+5}, v{t+7}, v{t+5}, vcc
            v_permlane32_swap_b32 v{t}, v{t+2}
            v_permlane32_swap_b32 v{t+1}, v{t+3}
            s_mov_b32 exec_hi, 0
            buffer_store_dwordx4 {vr(t,4)}, v{t+8}, {sr(SWS,4)}, s{sT0} offen sc1
            buffer_store_dwordx2 {vr(t+4,2)}, v{t+9}, {sr(SWS,4)}, s{sT0} offen offset:1024 sc1
            s_mov_b32 exec_hi, -1
            v_fmac_f32 v{t+10}, v{a0}, v{a0}
            v_fmac_f32 v{t+10}, v{a0+1}, v{a0+1}
            v_fmac_f32 v{t+10}, v{a0+2}, v{a0+2}
            v_fmac_f32 v{t+10}, v{a0+3}, v{a0+3}
            v_mov_b32 v{t+11}, v{t+10}
            v_permlane32_swap_b32 v{t+10}, v{t+11}
            v_add_f32 v{t+10}, v{t+10}, v{t+11}
            v_mov_b32 v{t+11}, v{t+10}
            v_permlane16_swap_b32 v{t+10}, v{t+11}
            v_add_f32 v{t+10}, v{t+10}, v{t+11}
            """)
            for sh in (1, 2, 4, 8):
                p(f"v_max_u32_dpp v{t+10}, v{t+10}, v{t+10} row_shr:{sh} row_mask:0xf bank_mask:0xf")
            p(f"v_readlane_b32 s{sKMAX}, v{t+10}, 15")
        else:
            p(f"""
            s_mul_i32 s{sT1}, s{sT1}, 672
            s_add_u32 s{sT0}, s{sT0}, s{sT1}
            v_cmp_eq_u32 vcc, 4, v1
            v_and_b32 v3, 1, v2
            v_lshl_add_u32 v3, v3, 4, v1           ; d
            v_lshlrev_b32 v3, 4, v3
            v_lshrrev_b32 v2, 1, v2
            v_mul_u32_u24 v2, 336, v2
            v_add_u32 v{t+8}, v3, v2
            v_cvt_pk_bf16_f32 v{t}, v{a0}, v{a0+1}
            v_cvt_pk_bf16_f32 v{t+1}, v{a0+2}, v{a0+3}
            v_cvt_pk_bf16_f32 v{t+2}, v{a1}, v{a1+1}
            v_cvt_pk_bf16_f32 v{t+3}, v{a1+2}, v{a1+3}
            v_mov_b32 v{t+6}, 0x3f803f80
            v_cndmask_b32 v{t+2}, v{t+2}, v{t+6}, vcc
            v_cndmask_b32 v{t+3}, v{t+3}, v{t+6}, vcc
            s_mov_b32 s{sKMAX}, 0
            v_permlane16_swap_b32 v{t}, v{t+2}
            v_permlane16_swap_b32 v{t+1}, v{t+3}
            s_mov_b32 exec_lo, 0x001fffff
            s_mov_b32 exec_hi, 0x001fffff
            buffer_store_dwordx4 {vr(t,4)}, v{t+8}, {sr(SWS,4)}, s{sT0} offen offset:1536 sc1
            s_mov_b64 exec, -1
            """)

    def qstage(self, s0, s1, acc):
        p = self.p
        d = DsTracker(p)
        def rd(s, mu):
            a, base = (vT + 2, s * 5120) if s < 12 else (vT + 3, (s - 12) * 5120)
            for h in range(2):
                d.issue(f"ds_read_b64_tr_b16 {vr(vAF+4*mu+2*h,2)}, v{a} offset:{base + h*1280 + mu*32}", (s, mu))
        for mu in range(5):
            rd(s0, mu)
        for s in range(s0, s1):
            for mu in range(5):
                d.need((s, mu))
                a = vr(acc + 4*mu, 4)
                p(f"v_mfma_f32_16x16x32_bf16 {a}, {vr(vAF+4*mu,4)}, {vr(vX+4*s,4)}, {a}")
                if s + 1 < s1:
                    rd(s + 1, mu)

    def frontB(self):
        p = self.p
        p.label("L_frontB")
        npf = 0
        P = 120
        p(f"""
        s_sub_u32 s{sT5}, s{sW}, 4
        s_cmp_eq_u32 s{sSSM}, 0
        s_cbranch_scc1 L_noparam
        s_add_u32 s{sT1}, s{sCH0}, s{sT5}
        s_mul_i32 s{sT0}, s{sT1}, 384
        s_lshl_b32 s{sT1}, s{sT1}, 1
        v_lshlrev_b32 v1, 1, v{vLANE}
        v_mov_b32 v2, 0
        """)
        for i in range(13):
            p(f"v_mov_b32 v{P+i}, 0")
        p(f"v_mov_b32 v{vDSK}, 0")
        p(f"buffer_load_short_d16_hi v{P+12}, v2, {sr(SLD,4)}, s{sT1} offen")
        for g in range(3):
            for k, srd in enumerate((SLA, SAI, SCR, SCI)):
                p(f"buffer_load_short_d16_hi v{P+4*g+k}, v1, {sr(srd,4)}, s{sT0} offen offset:{128*g}")
        p(f"buffer_load_short_d16_hi v{vDSK}, v2, {sr(SDS,4)}, s{sT1} offen")
        p.label("L_noparam")
        p(f"s_lshl_b32 s{sT0}, s{sT5}, 6")
        for m in range(5):
            p(f"""
            v_add_u32 v1, {256*m}, v{vLANE}
            v_add_u32 v1, s{sT0}, v1
            """)
            self.div10(2, 3, 1, vT)
            p(f"""
            v_and_b32 v1, 4, v2
            v_and_b32 v{vT}, 8, v2
            v_and_b32 v2, 0xfffffff3, v2
            v_lshl_or_b32 v2, v1, 1, v2
            v_lshrrev_b32 v{vT}, 1, v{vT}
            v_or_b32 v2, v2, v{vT}
            v_mul_u32_u24 v2, 1280, v2
            v_lshl_add_u32 v{vWD+m}, v3, 4, v2
            """)
        p(f"""
        s_mul_i32 s{sT0}, s{sHG}, 160
        s_lshl_b32 s{sT1}, s{sT5}, 10
        s_add_u32 s{sT1}, s{sT1}, {L_WQ}
        """)
        for n in range(25):
            if n and n % 5 == 0:
                p(f"s_add_u32 s{sT0}, s{sT0}, {128*1280}")
            self.dma(SWQ, vWD + n % 5, f"s{sT0}", f"s_add_u32 m0, s{sT1}, {n*4096}")
        p(f"""
        s_cmp_eq_u32 s{sSSM}, 0
        s_cbranch_scc1 L_frontB_nossm
        s_waitcnt vmcnt({39+npf})
        v_readfirstlane_b32 s{sNONCE}, v{vG}
        s_barrier
        s_add_u32 s{sNONCE}, s{sNONCE}, {hx(NONCE_ADD)}
        """)
        self.stamp(1)
        self.kgen(npf)
        p("s_branch L_frontB_join")
        p.label("L_frontB_nossm")
        p(f"""
        s_waitcnt vmcnt({25+npf})
        v_readfirstlane_b32 s{sNONCE}, v{vG}
        s_barrier
        s_add_u32 s{sNONCE}, s{sNONCE}, {hx(NONCE_ADD)}
        s_waitcnt vmcnt({15+npf})
        s_barrier
        s_waitcnt vmcnt({5+npf})
        s_barrier
        s_waitcnt vmcnt(0)
        s_barrier
        """)
        p.label("L_frontB_join")
        self.stamp(4)
        lp = "L_kvpoll"
        p(f"""
        v_lshlrev_b32 v1, 5, v{vLANE}
        s_mov_b32 s{sCNT}, {self.c.spin}
        s_mov_b32 s{sT0}, {WS_KVFLAG}
        {lp}:
        buffer_load_dwordx4 {vr(vT,4)}, v1, {sr(SWS,4)}, s{sT0} offen sc1
        buffer_load_dwordx4 {vr(vT+4,4)}, v1, {sr(SWS,4)}, s{sT0} offen offset:16 sc1
        s_sub_u32 s{sCNT}, s{sCNT}, 1
        s_waitcnt vmcnt(0)
        v_xor_b32 v2, s{sNONCE}, v{vT}
        v_xor_b32 v3, s{sNONCE}, v{vT+2}
        v_xor_b32 v{vT}, s{sNONCE}, v{vT+4}
        v_xor_b32 v{vT+2}, s{sNONCE}, v{vT+6}
        v_or3_b32 v2, v2, v3, v{vT}
        v_or_b32 v2, v2, v{vT+2}
        v_cmp_ne_u32 vcc, 0, v2
        s_cbranch_vccz L_kvready
        s_cmp_eq_u32 s{sCNT}, 0
        s_cbranch_scc1 L_kvready
        s_sleep 1
        s_branch {lp}
        L_kvready:
        """)
        self.stamp(5)
        p(f"""
        s_sub_u32 s{sT5}, s{sW}, 4
        s_mul_i32 s{sT0}, s{sT5}, 3072
        s_add_u32 s{sT1}, s{sT0}, {L_KV}
        s_add_u32 s{sT0}, s{sT0}, {WS_KVF}
        """)
        for c in range(3):
            p(f"s_add_u32 m0, s{sT1}, {c*KV_SLOT}")
            for i in range(3):
                p(f"buffer_load_dwordx4 v{vDMA}, {sr(SWS,4)}, s{sT0} offen offset:{1024*i} sc1 lds")
            if c < 2:
                p(f"s_add_u32 s{sT0}, s{sT0}, {KV_SLOT}")
        p(f"""
        v_max_u32 v2, v{vT+1}, v{vT+3}
        v_max3_u32 v2, v2, v{vT+5}, v{vT+7}
        """)
        for sh in (1, 2, 4, 8):
            p(f"v_max_u32_dpp v2, v2, v2 row_shr:{sh} row_mask:0xf bank_mask:0xf")
        p(f"""
        v_max_u32_dpp v2, v2, v2 row_bcast:15 row_mask:0xa bank_mask:0xf
        v_max_u32_dpp v2, v2, v2 row_bcast:31 row_mask:0xc bank_mask:0xf
        v_mov_b32 v1, {L_PERSIST}
        v_readlane_b32 s{sT2}, v2, 63
        v_mov_b32 v2, s{sT2}
        ds_write_b32 v1, v2 offset:8
        s_waitcnt vmcnt(6) lgkmcnt(0)
        s_barrier
        """)
        self.stamp(6)

    def kgen(self, npf):
        p = self.p
        P = 120
        LDT, DT = 132, 133
        t = 134
        W1, W2, W4, W8, W128, W256, C = 142, 144, 146, 148, 150, 152, 154
        X, Y, TX, TY, G0, G1 = 156, 158, 160, 162, 164, 166
        TA = 170
        CV = [168, 169, 212, 213]
        BF, AF = 172, 204
        sL, sLlo, sLn2 = sC0, sC1, sC2
        def exp_precise(dst, x, t0, t1):
            p(f"""
            v_mul_f32 v{t0}, s{sL}, v{x}
            v_fma_f32 v{t1}, v{x}, s{sL}, -v{t0}
            v_fmac_f32 v{t1}, s{sLlo}, v{x}
            v_exp_f32 v{t0}, v{t0}
            v_mul_f32 v{t1}, s{sLn2}, v{t1}
            v_fma_f32 v{dst}, v{t0}, v{t1}, v{t0}
            v_cvt_pk_bf16_f32 v{dst}, v{dst}, v{dst}
            v_and_b32 v{dst}, 0xffff0000, v{dst}
            """)
        L = math.log2(math.e)
        Lhi = struct.unpack("<f", struct.pack("<f", L))[0]
        p(f"""
        s_mov_b32 s{sL}, {hx(f2u(L))}
        s_mov_b32 s{sLlo}, {hx(f2u(L - Lhi))}
        s_mov_b32 s{sLn2}, {hx(f2u(math.log(2.0)))}
        s_sub_u32 s{sT5}, s{sW}, 4
        s_mul_i32 s{sT0}, s{sT5}, {T_SIZE}
        s_add_u32 s{sT0}, s{sT0}, {L_T}
        s_mov_b32 m0, s{sT0}
        v_and_b32 v1, 31, v{vLANE}
        v_mul_u32_u24 v1, {T_PITCH}, v1
        v_lshrrev_b32 v2, 5, v{vLANE}
        v_lshl_add_u32 v1, v2, 4, v1
        v_add_u32 v{TA}, s{sT0}, v1
        """)
        for r in range(16):
            p(f"v_mov_b32 v{vKD+r}, 0")
        p(f"s_mov_b32 s{sCNT}, 0\ns_waitcnt vmcnt({25+npf})")
        exp_precise(DT, LDT, t, t + 1)
        p.label("L_kgen")
        exp_precise(t + 2, P, t, t + 1)
        p(f"""
        v_mul_f32 v{t}, v{t+2}, v{DT}
        v_mul_f32 v{t+1}, v{P+1}, v{DT}
        v_mul_f32 v{t}, s{sL}, v{t}
        v_mul_f32 v{t+1}, 0.15915494, v{t+1}
        v_add_f32 v{t+2}, v{DT}, v{DT}
        v_mul_f32 v{C}, v{P+2}, v{t+2}
        v_mul_f32 v{C+1}, v{P+3}, v{t+2}
        """)
        for w, k in ((W8, 3), (W128, 7), (W1, 0)):
            p(f"""
            v_ldexp_f32 v{t+2}, -v{t}, {k}
            v_ldexp_f32 v{t+3}, v{t+1}, {k}
            v_exp_f32 v{t+2}, v{t+2}
            v_fract_f32 v{t+3}, v{t+3}
            v_cos_f32 v{t+4}, v{t+3}
            v_sin_f32 v{t+5}, v{t+3}
            v_mul_f32 v{w}, v{t+2}, v{t+4}
            v_mul_f32 v{w+1}, v{t+2}, v{t+5}
            """)
        cv = [0]
        def put(src, row, neg=False, rows=()):
            c = CV[cv[0] % 4]; cv[0] += 1
            p(f"v_cvt_pk_bf16_f32 v{c}, v{src}, {'-' if neg else ''}v{src+1}")
            for r in (row,) + tuple(rows):
                p(f"ds_write_addtid_b32 v{c} offset:{r*T_PITCH}")
        def two(a, b):
            p(a[0]); p(b[0]); p(a[1]); p(b[1])
        p(f"v_mov_b32 v{CV[3]}, 0x00003f80\nds_write_addtid_b32 v{CV[3]} offset:0")
        two(self.cmul(W2, W1, W1, TX), self.cmul(W256, W128, W128, TY))
        put(W8, 1); put(W128, 16)
        two(self.cmul(X, W8, W8, TX), self.cmul(Y, W128, W8, TY))
        put(X, 2); put(Y, 17)
        for j in range(3, 16):
            two(self.cmul(X, X, W8, TX), self.cmul(Y, Y, W8, TY))
            put(X, j); put(Y, j + 15)
        two(self.cmul(W4, W2, W2, TX), self.cmul(Y, Y, W8, TY))
        put(Y, 31)
        for s in range(8):
            p(f"ds_read_b128 {vr(BF+4*s,4)}, v{TA} offset:{32*s}")
        def row(h, r): return 8 * (r // 4) + 4 * h + r % 4
        put(C, row(0, 0), True)
        seqX = [(row(0, r),) for r in range(1, 9)]
        two(self.cmul(X, C, W1, TX), self.cmul(G0, C, W256, TY))
        put(X, row(0, 1), True); put(G0, row(1, 0), True, (row(1, 1),))
        two(self.cmul(X, X, W1, TX), self.cmul(Y, G0, W2, TY))
        put(X, row(0, 2), True); put(Y, row(1, 2), True)
        two(self.cmul(X, X, W1, TX), self.cmul(Y, Y, W2, TY))
        put(X, row(0, 3), True); put(Y, row(1, 3), True, (row(1, 4), row(1, 5)))
        two(self.cmul(X, X, W1, TX), self.cmul(Y, Y, W2, TY))
        put(X, row(0, 4), True); put(Y, row(1, 6), True)
        two(self.cmul(X, X, W1, TX), self.cmul(Y, Y, W2, TY))
        put(X, row(0, 5), True); put(Y, row(1, 7), True, (row(1, 8),))
        two(self.cmul(X, X, W1, TX), self.cmul(G0, G0, W256, TY))
        put(X, row(0, 6), True); put(G0, row(0, 9), True)
        two(self.cmul(X, X, W1, TX), self.cmul(Y, G0, W4, TY))
        put(X, row(0, 7), True); put(Y, row(0, 10), True)
        two(self.cmul(X, X, W1, TX), self.cmul(Y, Y, W4, TY))
        put(X, row(0, 8), True); put(Y, row(0, 11), True)
        two(self.cmul(G1, G0, W256, TX), self.cmul(G0, G0, W256, TY))
        put(G1, row(1, 9), True)
        two(self.cmul(X, G1, W4, TX), self.cmul(G0, G0, W256, TY))
        put(X, row(1, 10), True); put(G0, row(0, 12), True)
        two(self.cmul(X, X, W4, TX), self.cmul(G1, G0, W256, TY))
        put(X, row(1, 11), True); put(G1, row(1, 12), True)
        two(self.cmul(X, G0, W8, TX), self.cmul(G0, G1, W256, TY))
        put(X, row(0, 13), True); put(G0, row(0, 14), True)
        two(self.cmul(X, G1, W8, TX), self.cmul(G1, G0, W256, TY))
        put(X, row(1, 13), True); put(G1, row(1, 14), True)
        two(self.cmul(X, G0, W8, TX), self.cmul(Y, G1, W8, TY))
        put(X, row(0, 15), True); put(Y, row(1, 15), True)
        d = DsTracker(p)
        d.issue(f"ds_read_b128 {vr(AF,4)}, v{TA} offset:0", 0)
        d.issue(f"ds_read_b128 {vr(AF+4,4)}, v{TA} offset:32", 1)
        for k in range(4):
            p(f"v_mov_b32 v{P+k}, v{P+4+k}")
        for k in range(4):
            p(f"v_mov_b32 v{P+4+k}, v{P+8+k}")
        for s in range(8):
            d.need(s)
            p(f"v_mfma_f32_32x32x16_bf16 {vr(vKD,16)}, {vr(AF+4*(s%2),4)}, {vr(BF+4*s,4)}, {vr(vKD,16)}")
            if s + 2 < 8:
                d.issue(f"ds_read_b128 {vr(AF+4*(s%2),4)}, v{TA} offset:{32*(s+2)}", s + 2)
        p(f"""
        s_add_u32 s{sCNT}, s{sCNT}, 1
        s_cmp_eq_u32 s{sCNT}, 1
        s_cbranch_scc1 L_kg1
        s_cmp_eq_u32 s{sCNT}, 2
        s_cbranch_scc1 L_kg2
        s_waitcnt vmcnt(0)
        s_barrier
        s_branch L_kgdone
        L_kg1:
        s_waitcnt vmcnt({15+npf})
        s_barrier
        s_branch L_kgen
        L_kg2:
        s_waitcnt vmcnt({5+npf})
        s_barrier
        s_branch L_kgen
        L_kgdone:
        """)

    def qsetup(self, half):
        p = self.p
        h = "AB"[half]
        t = vT
        p(f"""
        s_and_b32 s{sT0}, s{sW}, 3
        s_mul_i32 s{sT0}, s{sT0}, 40
        s_add_u32 s{sT0}, s{sT0}, {L_QX + half*32*QX_PITCH}
        v_and_b32 v1, 31, v{vLANE}
        v_lshrrev_b32 v2, 5, v{vLANE}
        v_mul_u32_u24 v3, {QX_PITCH}, v1
        v_lshl_add_u32 v3, v2, 3, v3
        v_add_u32 v3, s{sT0}, v3
        v_mov_b32 v{t+4}, {L_PERSIST}
        ds_read_b64 {vr(vQ16,2)}, v3
        ds_read_b64 {vr(vQ16+2,2)}, v3 offset:16
        ds_read_b64 {vr(vQ8,2)}, v3 offset:32
        ds_read_b32 v{t+5}, v{t+4} offset:8
        v_cmp_eq_u32 vcc, 0, v2
        v_mov_b32 v{vIDX}, 0xdddddddd
        v_add_u32 v{vKA}, {L_KV}, v{vDMA}
        v_lshlrev_b32 v{vK8A}, 3, v{vLANE}
        v_add_u32 v{vK8A}, {L_KV+1024}, v{vK8A}
        v_min_u32 v1, 20, v1
        v_mul_u32_u24 v2, 336, v2
        v_lshl_add_u32 v1, v1, 4, v2
        v_add_u32 v{vVA}, {L_KV+1536}, v1
        s_mov_b32 s{sT1}, {hx(f2u(1.02))}
        s_mov_b32 s{sT2}, {hx(f2u(-1.0 if self.c.force_fallback else 32.0))}
        s_waitcnt lgkmcnt(0)
        v_cndmask_b32 v{vQ8}, 0, v{vQ8}, vcc
        v_cndmask_b32 v{vQ8+1}, 0, v{vQ8+1}, vcc
        v_mov_b32 v{t}, 0
        v_dot2_f32_bf16 v{t}, v{vQ16}, v{vQ16}, v{t}
        v_dot2_f32_bf16 v{t}, v{vQ16+1}, v{vQ16+1}, v{t}
        v_dot2_f32_bf16 v{t}, v{vQ16+2}, v{vQ16+2}, v{t}
        v_dot2_f32_bf16 v{t}, v{vQ16+3}, v{vQ16+3}, v{t}
        v_dot2_f32_bf16 v{t}, v{vQ8}, v{vQ8}, v{t}
        v_dot2_f32_bf16 v{t}, v{vQ8+1}, v{vQ8+1}, v{t}
        v_mov_b32 v{t+1}, v{t}
        v_permlane32_swap_b32 v{t}, v{t+1}
        v_add_f32 v{t}, v{t}, v{t+1}
        v_mul_f32 v{t}, v{t}, v{t+5}
        v_sqrt_f32 v{t}, v{t}
        v_mul_f32 v{t}, s{sT1}, v{t}
        v_cmp_nge_f32 s[{sEX}:{sEX+1}], s{sT2}, v{t}
        v_cvt_pk_bf16_f32 v{t+1}, -v{t}, 0
        v_cndmask_b32 v{t+1}, v{t+1}, v{vQ8}, vcc
        s_cmp_eq_u64 s[{sEX}:{sEX+1}], 0
        s_cbranch_scc1 L_safe{h}
        v_mov_b32 v1, 1
        ds_write_b32 v{t+4}, v1
        s_waitcnt lgkmcnt(0)
        L_safe{h}:
        """)
        for r in range(16):
            p(f"v_mov_b32 v{vO+r}, 0")
        p(f"""
        s_barrier
        ds_read_b32 v1, v{t+4}
        """)
        p(f"s_lshl_b32 s{sT0}, s{sW}, 6\ns_mov_b32 s{sC0}, 52429")
        for m in range(5):
            p(f"""
            v_add_u32 v{t+8}, {512*m}, v{vLANE}
            v_add_u32 v{t+8}, s{sT0}, v{t+8}
            """)
            self.div10(t + 9, t + 10, t + 8, t + 11)
            p(f"""
            v_mul_u32_u24 v{t+9}, 1280, v{t+9}
            v_lshl_add_u32 v{vWD+m}, v{t+10}, 4, v{t+9}
            """)
        p(f"""
        s_waitcnt lgkmcnt(0)
        v_readfirstlane_b32 s{sT0}, v1
        s_cmp_eq_u32 s{sT0}, 0
        s_cbranch_scc1 L_fast{h}
        """)
        self.maxpass(half)
        p(f"s_branch L_go{h}")
        p.label(f"L_fast{h}")
        p(f"v_mov_b32 v{vQ8}, v{t+1}")
        p.label(f"L_go{h}")
        self.stamp(7)

    def maxpass(self, half):
        p = self.p
        h = "AB"[half]
        t = vT
        slot3 = 3 * KV_SLOT
        p(f"""
        s_waitcnt vmcnt(0)
        s_barrier
        v_mov_b32 v{t+2}, 0xff800000
        s_mov_b32 s{sCNT}, 0
        s_and_b32 s{sT0}, s{sW}, 3
        s_mul_i32 s{sT0}, s{sT0}, 3072
        s_add_u32 s{sT1}, s{sT0}, {L_KV + slot3}
        s_add_u32 s{sT0}, s{sT0}, {WS_KVF}
        L_maxloop{h}:
        """)
        if half == 0:
            p(f"s_mov_b32 m0, s{sT1}")
            for i in range(3):
                p(f"buffer_load_dwordx4 v{vDMA}, {sr(SWS,4)}, s{sT0} offen offset:{1024*i} sc1 lds")
            p("s_waitcnt vmcnt(0)")
        p("s_barrier")
        for i in range(4):
            p(f"""
            ds_read_b128 {vr(vK16,4)}, v{vKA} offset:{slot3 + i*KV_TILE}
            ds_read_b64 {vr(vK8,2)}, v{vK8A} offset:{slot3 + i*KV_TILE}
            s_waitcnt lgkmcnt(0)
            v_mfma_f32_32x32x16_bf16 {vr(vSA,16)}, {vr(vK16,4)}, {vr(vQ16,4)}, 0
            v_mfma_f32_32x32x8bf16_1k {vr(vSA,16)}, {vr(vK8,2)}, {vr(vQ8,2)}, {vr(vSA,16)}
            """)
            for r in range(0, 16, 2):
                p(f"v_max3_f32 v{t+2}, v{t+2}, v{vSA+r}, v{vSA+r+1}")
        p(f"""
        s_barrier
        s_add_u32 s{sT0}, s{sT0}, {KV_SLOT}
        s_add_u32 s{sCNT}, s{sCNT}, 1
        s_cmp_lt_u32 s{sCNT}, 16
        s_cbranch_scc1 L_maxloop{h}
        v_mov_b32 v{t+3}, v{t+2}
        v_permlane32_swap_b32 v{t+2}, v{t+3}
        v_max_f32 v{t+2}, v{t+2}, v{t+3}
        v_and_b32 v{t+3}, 0xffff0000, v{t+2}
        v_sub_f32 v{t+2}, v{t+2}, v{t+3}
        v_and_b32 v{t+6}, 0xffff0000, v{t+2}
        v_sub_f32 v{t+2}, v{t+2}, v{t+6}
        v_cvt_pk_bf16_f32 v{t+3}, -v{t+3}, -v{t+6}
        v_cvt_pk_bf16_f32 v{t+2}, -v{t+2}, 0
        v_cmp_gt_u32 vcc, 32, v{vLANE}
        v_cndmask_b32 v{vQ8}, v{t+3}, v{vQ8}, vcc
        v_cndmask_b32 v{vQ8+1}, v{t+2}, v{vQ8+1}, vcc
        """)

    def attention(self, half):
        p = self.p
        d = DsTracker(p)
        def toff(tau): return ((tau // 4) % 4) * KV_SLOT + (tau % 4) * KV_TILE
        def LK16(tau): d.issue(f"ds_read_b128 {vr(vK16,4)}, v{vKA} offset:{toff(tau)}", ("K16", tau))
        def LK8(tau): d.issue(f"ds_read_b64 {vr(vK8,2)}, v{vK8A} offset:{toff(tau)}", ("K8", tau))
        def LV(tau, i): d.issue(f"ds_read_b128 {vr((vV0, vV1)[i],4)}, v{vVA} offset:{toff(tau)+672*i}", (f"V{i}", tau))
        def S(tau): return (vSA, vSB)[tau % 2]
        def QK16(tau): p(f"v_mfma_f32_32x32x16_bf16 {vr(S(tau),16)}, {vr(vK16,4)}, {vr(vQ16,4)}, 0")
        def QK8(tau): p(f"v_mfma_f32_32x32x8bf16_1k {vr(S(tau),16)}, {vr(vK8,2)}, {vr(vQ8,2)}, {vr(S(tau),16)}")
        def PV(tau, i): p(f"v_smfmac_f32_32x32x32_bf16 {vr(vO,16)}, {vr((vV0, vV1)[i],4)}, {vr(S(tau)+8*i,8)}, v{vIDX}")
        p(f"""
        s_and_b32 s{sT0}, s{sW}, 3
        s_mul_i32 s{sT0}, s{sT0}, 3072
        s_add_u32 s{sT1}, s{sT0}, {L_KV}
        s_add_u32 s{sT0}, s{sT0}, {WS_KVF + (4 if half == 0 else 3)*KV_SLOT}
        s_mul_i32 s{sT2}, s{sHG}, 160
        s_lshl_b32 s{sT3}, s{sW}, 10
        s_add_u32 s{sT3}, s{sT3}, {L_WO}
        """)
        wo_n = [0]
        def wo_dma(k):
            for _ in range(k):
                n = wo_n[0]; wo_n[0] += 1
                if n and n % 5 == 0:
                    p(f"s_add_u32 s{sT2}, s{sT2}, {256*1280}")
                self.dma(SWO, vWD + n % 5, f"s{sT2}", f"s_add_u32 m0, s{sT3}, {n*8192}")
        def xbar(c):
            k = c + 1
            if half == 1 and k in (1, 2):
                p(f"s_waitcnt vmcnt({3 if k == 1 else 5})")
            elif k >= 3 and (k % 2) == half:
                p(f"s_waitcnt vmcnt({0 if k == 15 else 2})")
            p("s_barrier")
            k = c + 3
            if k <= 15 and (k % 2) == half:
                p(f"s_add_u32 m0, s{sT1}, {(k % 4)*KV_SLOT}")
                for i in range(3):
                    p(f"buffer_load_dwordx4 v{vDMA}, {sr(SWS,4)}, s{sT0} offen offset:{1024*i} sc1 lds")
                p(f"s_add_u32 s{sT0}, s{sT0}, {2*KV_SLOT}")
                if half == 1 and c == 2:
                    self.u_gather()
                if k != 15:
                    wo_dma(2)
            elif half == 0 and c == 13:
                wo_dma(1)
        m = self.c.mpos
        LK16(0); LK8(0)
        d.need(("K8", 0))
        QK16(0); QK8(0)
        LK16(1); LK8(1); LV(0, 0)
        for tau in range(64):
            s = S(tau)
            for e in range(16):
                if e == m[0]:
                    if tau > 0:
                        d.need(("V1", tau - 1), ("K16", tau + 1), ("K8", tau + 1))
                        PV(tau - 1, 1)
                    else:
                        d.need(("K16", 1), ("K8", 1))
                    LV(tau, 1)
                if e == m[1] and tau + 1 < 64:
                    QK16(tau + 1)
                    if tau % 4 == 2 and tau // 4 < 15:
                        xbar(tau // 4)
                    if tau + 2 < 64: LK16(tau + 2)
                if e == m[2] and tau + 1 < 64:
                    QK8(tau + 1)
                    if tau + 2 < 64: LK8(tau + 2)
                if e == m[3]:
                    d.need(("V0", tau))
                    PV(tau, 0)
                    if tau + 1 < 64: LV(tau + 1, 0)
                p(f"v_exp_f32 v{s+e}, v{s+e}")
        d.drain()
        p("s_barrier")
        PV(63, 1)

    def u_gather(self):
        p = self.p
        p(f"""
        s_cmp_eq_u32 s{sSSM}, 0
        s_cbranch_scc1 L_nou
        s_sub_u32 s{sT4}, s{sW}, 4
        s_mul_i32 s{sT4}, s{sT4}, {512*1280}
        s_lshl_b32 s{sT5}, s{sCH0}, 1
        s_add_u32 s{sT4}, s{sT4}, s{sT5}
        v_mul_u32_u24 v1, {4*1280}, v{vLANE}
        """)
        for g in range(2):
            for i in range(4):
                p(f"buffer_load_dwordx2 {vr(vU+8*g+2*i,2)}, v1, {sr(SU,4)}, s{sT4} offen offset:{1280*i}")
            if g == 0:
                p(f"s_add_u32 s{sT4}, s{sT4}, {256*1280}")
        p.label("L_nou")

    def o_store(self, half):
        p = self.p
        t = vT
        p(f"""
        s_mul_i32 s{sT0}, s{sQB}, 81920
        s_add_u32 s{sT0}, s{sT0}, {WS_O + half*2*16384}
        s_add_u32 s{sT1}, s{sT0}, {65536 - half*2*16384 + half*2*4096}
        s_and_b32 s{sT2}, s{sW}, 3
        s_lshl_b32 s{sT3}, s{sHG}, 2
        s_add_u32 s{sT3}, s{sT3}, s{sT2}          ; 4 hg + p
        s_lshl_b32 s{sT4}, s{sT3}, 9
        s_add_u32 s{sT0}, s{sT0}, s{sT4}          ; + (2hg + p/2)*1024 + (p%2)*512
        s_lshl_b32 s{sT4}, s{sT3}, 7
        s_add_u32 s{sT1}, s{sT1}, s{sT4}          ; + hg*512 + p*128
        v_and_b32 v1, 15, v{vLANE}
        v_bfe_u32 v2, v{vLANE}, 4, 1
        v_lshrrev_b32 v3, 5, v{vLANE}
        v_lshlrev_b32 v{t+8}, 4, v1
        v_lshl_add_u32 v{t+8}, v3, 8, v{t+8}
        v_lshl_add_u32 v{t+8}, v2, 14, v{t+8}
        v_lshlrev_b32 v{t+9}, 3, v1
        v_lshl_add_u32 v{t+9}, v2, 12, v{t+9}
        v_mov_b32 v{t+10}, v{vO+8}
        v_mov_b32 v{t+11}, v{vO+8}
        v_permlane32_swap_b32 v{t+10}, v{t+11}
        v_rcp_f32 v{t+11}, v{t+11}
        """)
        for r in range(12):
            p(f"v_mul_f32 v{vO+r}, v{vO+r}, v{t+11}")
        for r in range(6):
            p(f"v_cvt_pk_bf16_f32 v{t+r}, v{vO+2*r}, v{vO+2*r+1}")
        p(f"""
        buffer_store_dwordx4 {vr(t,4)}, v{t+8}, {sr(SWS,4)}, s{sT0} offen sc1
        s_mov_b32 exec_hi, 0
        buffer_store_dwordx2 {vr(t+4,2)}, v{t+9}, {sr(SWS,4)}, s{sT1} offen sc1
        s_mov_b32 exec_hi, -1
        """)
        self.stamp(8)

    def tailA(self):
        p = self.p
        t = vT
        acc = vSA
        p(f"""
        v_lshrrev_b32 v2, 4, v{vLANE}          ; g
        v_bfe_u32 v3, v{vLANE}, 2, 2           ; r
        v_and_b32 v1, 3, v{vLANE}
        v_lshlrev_b32 v1, 3, v1                ; c4*8
        v_lshrrev_b32 v{t}, 1, v2
        v_and_b32 v2, 1, v2
        v_mul_u32_u24 v{t+1}, 20, v{t}
        v_lshl_add_u32 v{t+1}, v2, 2, v{t+1}
        v_add_u32 v{t+1}, v{t+1}, v3
        v_mul_u32_u24 v{t+1}, 160, v{t+1}
        v_add_u32 v{t+1}, v{t+1}, v1
        v_add_u32 v{t+12}, {L_WO}, v{t+1}
        v_add_u32 v{t+13}, {L_WO+64000}, v{t+1}
        v_mul_u32_u24 v{t+1}, 80, v{t}
        v_mul_u32_u24 v{t+2}, 40, v2
        v_add3_u32 v{t+1}, v{t+1}, v{t+2}, v3
        v_mul_u32_u24 v{t+1}, 160, v{t+1}
        v_add_u32 v{t+1}, v{t+1}, v1
        v_add_u32 v{t+14}, {L_WO+16*160}, v{t+1}
        v_add_u32 v{t+15}, {L_WO+16*160+51200}, v{t+1}
        v_and_b32 v1, 15, v{vLANE}
        v_lshlrev_b32 v{t+16}, 3, v1
        v_lshl_add_u32 v{t+16}, v{t}, 9, v{t+16}
        v_lshl_add_u32 v{t+16}, v2, 8, v{t+16}
        v_mul_u32_u24 v{t+17}, 2560, v1
        v_lshrrev_b32 v3, 4, v{vLANE}
        v_lshl_add_u32 v{t+18}, v3, 3, v{t+17}
        v_lshl_add_u32 v{t+17}, v2, 5, v{t+17}
        v_lshl_add_u32 v{t+17}, v{t}, 4, v{t+17}
        v_and_b32 v1, 7, v{vLANE}
        v_lshlrev_b32 v{t+19}, 3, v1
        s_lshl_b32 s{sT4}, s{sQB}, 7
        s_add_u32 s{sT4}, s{sT4}, {WS_OFLAG}
        """)
        for r in range(20):
            p(f"v_mov_b32 v{acc+r}, 0")
        p(f"""
        s_waitcnt vmcnt(0)
        s_barrier
        s_cmp_lg_u32 s{sW}, 0
        s_cbranch_scc1 L_noof
        s_lshl_b32 s{sT0}, s{sHG}, 3
        s_add_u32 s{sT0}, s{sT0}, s{sT4}
        v_mov_b32 v2, s{sNONCE}
        v_mov_b32 v3, 0
        v_mov_b32 v1, 0
        s_mov_b64 exec, 1
        buffer_store_dwordx2 v[2:3], v1, {sr(SWS,4)}, s{sT0} offen sc1
        s_cmp_lg_u32 s2, 0
        s_cbranch_scc1 L_nog
        buffer_store_dword v2, v1, {sr(SWS,4)}, 0 offen sc1
        L_nog:
        s_mov_b64 exec, -1
        L_noof:
        """)
        self.stamp(9)
        d = DsTracker(p)
        def rd(s, mu):
            if s < 16:
                a, base, step = (t + 12, s * 6400, 1280) if s < 10 else (t + 13, (s - 10) * 6400, 1280)
            else:
                q = s - 16
                a, base, step = (t + 14, q * 25600, 3200) if q < 2 else (t + 15, (q - 2) * 25600, 3200)
            for h in range(2):
                d.issue(f"ds_read_b64_tr_b16 {vr(vAF+4*mu+2*h,2)}, v{a} offset:{base + h*step + mu*32}", (s, mu))
        for mu in range(5):
            rd(0, mu)
        p(f"""
        s_mov_b32 s{sCNT}, {self.c.spin}
        L_opoll:
        buffer_load_dword v1, v{t+19}, {sr(SWS,4)}, s{sT4} offen sc1
        s_sub_u32 s{sCNT}, s{sCNT}, 1
        s_waitcnt vmcnt(0)
        v_cmp_ne_u32 vcc, s{sNONCE}, v1
        s_cbranch_vccz L_oready
        s_cmp_eq_u32 s{sCNT}, 0
        s_cbranch_scc1 L_oready
        s_sleep 1
        s_branch L_opoll
        L_oready:
        s_mul_i32 s{sT0}, s{sQB}, 81920
        s_lshl_b32 s{sT1}, s{sW}, 14
        s_add_u32 s{sT1}, s{sT1}, s{sT0}
        s_add_u32 s{sT1}, s{sT1}, {WS_O}
        s_lshl_b32 s{sT2}, s{sW}, 12
        s_add_u32 s{sT2}, s{sT2}, s{sT0}
        s_add_u32 s{sT2}, s{sT2}, {WS_O + 65536}
        """)
        for s in range(16):
            if s and s % 4 == 0:
                p(f"s_add_u32 s{sT1}, s{sT1}, 4096")
            p(f"buffer_load_dwordx4 {vr(vX+4*s,4)}, v{vDMA}, {sr(SWS,4)}, s{sT1} offen offset:{1024*(s%4)} sc1")
        for q in range(4):
            for h in range(2):
                p(f"buffer_load_dwordx2 {vr(vX+64+4*q+2*h,2)}, v{t+16}, {sr(SWS,4)}, s{sT2} offen offset:{1024*q+128*h} sc1")
        if self.c.stamps:
            self.stamp(10)
            d.q = []
        for s in range(20):
            left = (15 - s) + 8 if s < 16 else 2 * (19 - s)
            p(f"s_waitcnt vmcnt({left})")
            for mu in range(5):
                d.need((s, mu))
                a = vr(acc + 4*mu, 4)
                p(f"v_mfma_f32_16x16x32_bf16 {a}, {vr(vAF+4*mu,4)}, {vr(vX+4*s,4)}, {a}")
                if s + 1 < 20:
                    rd(s + 1, mu)
        p(f"""
        s_lshl_b32 s{sT0}, s{sQB}, 2
        s_add_u32 s{sT0}, s{sT0}, s{sW}
        s_mul_i32 s{sT0}, s{sT0}, {16*2560}
        s_mul_i32 s{sT1}, s{sHG}, 160
        s_add_u32 s{sT0}, s{sT0}, s{sT1}
        """)
        for mu in range(5):
            p(f"""
            v_cvt_pk_bf16_f32 v{vAF+2*mu}, v{acc+4*mu}, v{acc+4*mu+1}
            v_cvt_pk_bf16_f32 v{vAF+2*mu+1}, v{acc+4*mu+2}, v{acc+4*mu+3}
            """)
        for k in range(2):
            b = vAF + 4 * k
            p(f"""
            v_permlane16_swap_b32 v{b}, v{b+2}
            v_permlane16_swap_b32 v{b+1}, v{b+3}
            buffer_store_dwordx4 {vr(b,4)}, v{t+17}, {sr(SOUT,4)}, s{sT0} offen offset:{64*k}
            """)
        p(f"buffer_store_dwordx2 {vr(vAF+8,2)}, v{t+18}, {sr(SOUT,4)}, s{sT0} offen offset:128")
        if self.c.stamps:
            p("s_waitcnt vmcnt(0)")
            self.stamp(11)
            self.stamps_out()
        p("s_endpgm")

    def tailB(self):
        p = self.p
        t = vT
        D = vKD
        p(f"""
        s_cmp_eq_u32 s{sSSM}, 0
        s_cbranch_scc0 L_ssmtail
        s_waitcnt vmcnt(0)
        s_barrier
        """)
        self.stamps_out()
        p("s_endpgm")
        p.label("L_ssmtail")
        p(f"""
        s_sub_u32 s{sT5}, s{sW}, 4
        s_mul_i32 s{sT0}, s{sT5}, {KC_PITCH}
        s_add_u32 s{sT0}, s{sT0}, {L_KC}
        s_mul_i32 s{sT1}, s{sT5}, {UT_PITCH}
        s_add_u32 s{sT1}, s{sT1}, {L_UT}
        s_mov_b32 s{sSEL_LO}, 0x05040100
        s_mov_b32 s{sSEL_HI}, 0x07060302
        s_mov_b64 exec, 1
        v_add_f32 v{D}, v{D}, v{vDSK}
        s_mov_b64 exec, -1
        v_and_b32 v1, 31, v{vLANE}
        v_lshrrev_b32 v2, 5, v{vLANE}
        v_lshlrev_b32 v1, 4, v1
        v_lshl_add_u32 v1, v2, 9, v1
        v_sub_u32 v1, s{sT0}, v1
        v_add_u32 v1, {4080-3072}, v1
        v_and_b32 v2, 1, v{vLANE}
        v_cmp_eq_u32 vcc, 0, v2
        v_cndmask_b32 v{t+16}, v{D+13}, v{D+12}, vcc
        v_cndmask_b32 v{t+17}, v{D+15}, v{D+14}, vcc
        """)
        pats = [
            ([D+i for i in range(9)], 3072),
            ([D+9]*3 + [D+10]*3 + [D+11]*3, 2048),
            ([D+12]*4 + [t+16] + [D+13]*4, 1024),
            ([D+14]*4 + [t+17] + [D+15]*4, 0),
        ]
        for k, (x, off) in enumerate(pats):
            b = t + 8 * (k % 2)
            for i in range(4):
                p(f"v_cvt_pk_bf16_f32 v{b+i}, v{x[7-2*i]}, v{x[6-2*i]}")
            p(f"ds_write_b128 v1, {vr(b,4)} offset:{off}")
            for i in range(4):
                p(f"v_cvt_pk_bf16_f32 v{b+4+i}, v{x[8-2*i]}, v{x[7-2*i]}")
            p(f"ds_write_b128 v1, {vr(b+4,4)} offset:{off+KC_COPY1}")
        p(f"""
        v_mov_b32 v{t+20}, 0
        v_mov_b32 v{t+21}, 0
        v_mov_b32 v{t+22}, 0
        v_mov_b32 v{t+23}, 0
        v_cvt_pk_bf16_f32 v{t+24}, v{D}, 0
        v_mov_b32 v{t+25}, 0
        v_mov_b32 v{t+26}, 0
        v_mov_b32 v{t+27}, 0
        v_mov_b32 v2, s{sT0}
        v_lshlrev_b32 v3, 3, v{vLANE}
        v_add_u32 v3, s{sT1}, v3
        s_mov_b64 exec, 1
        ds_write_b128 v2, {vr(t+20,4)} offset:4096
        ds_write_b128 v2, {vr(t+20,4)} offset:4112
        ds_write_b128 v2, {vr(t+24,4)} offset:{KC_COPY1+4096}
        ds_write_b128 v2, {vr(t+20,4)} offset:{KC_COPY1+4112}
        s_mov_b32 exec_lo, -1
        s_mov_b32 exec_hi, 0x0fffffff
        ds_write_b64 v3, {vr(t+20,2)}
        s_mov_b64 exec, -1
        s_lshl_b32 s{sT2}, s{sT5}, 10
        s_add_u32 s{sT2}, s{sT2}, {L_UT+480}
        v_lshlrev_b32 v3, 3, v{vLANE}
        v_add_u32 v{t+28}, s{sT2}, v3
        """)
        for g in range(2):
            for c in range(4):
                sel = (sSEL_LO, sSEL_HI)[c % 2]
                b = t + 2 * ((4*g + c) % 4)
                u = vU + 8 * g + c // 2
                p(f"""
                v_perm_b32 v{b}, v{u+2}, v{u}, s{sel}
                v_perm_b32 v{b+1}, v{u+6}, v{u+4}, s{sel}
                ds_write_b64 v{t+28}, {vr(b,2)} offset:{c*UT_PITCH + g*512}
                """)
        acc, B, A, AA, BA = 36, 120, 152, 184, 188
        p(f"""
        v_and_b32 v1, 15, v{vLANE}
        v_lshrrev_b32 v2, 4, v{vLANE}
        v_lshlrev_b32 v3, 4, v2
        v_lshl_add_u32 v{BA}, v1, 5, v3
        v_add_u32 v{BA}, s{sT1}, v{BA}
        v_add_u32 v{BA}, 448, v{BA}
        v_lshlrev_b32 v{t}, 1, v1
        v_sub_u32 v3, v3, v{t}
        v_add_u32 v3, s{sT0}, v3
        v_and_b32 v1, 1, v1
        v_cmp_eq_u32 vcc, 0, v1
        v_mov_b32 v{t}, {KC_COPY1+2}
        v_cndmask_b32 v{t}, 0, v{t}, vcc
        v_add_u32 v3, v3, v{t}
        """)
        for k in range(4):
            p(f"v_add_u32 v{AA+k}, {4062 - 512*(2*k+1)}, v3")
        for r in range(32):
            p(f"v_mov_b32 v{acc+r}, 0")
        p("s_waitcnt vmcnt(0) lgkmcnt(0)\ns_barrier")
        self.stamp(9)
        d = DsTracker(p)
        def LA(i):
            o = 128 if i % 2 == 0 else 0
            d.issue(f"ds_read2_b32 {vr(A+4*i,2)}, v{AA+i//2} offset0:{o} offset1:{o+1}", ("A", i))
            d.issue(f"ds_read2_b32 {vr(A+4*i+2,2)}, v{AA+i//2} offset0:{o+2} offset1:{o+3}", ("A", i))
        def LB(k):
            d.issue(f"ds_read_b128 {vr(B+4*k,4)}, v{BA} offset:{512*k}", ("B", k))
        for i in range(8):
            LB(7 - i); LA(i)
        p(f"s_mov_b32 s{sCNT}, 8")
        p.label("L_conv")
        p(f"v_add_u32 v{BA}, -64, v{BA}")
        for k in range(4):
            p(f"v_add_u32 v{AA+k}, -64, v{AA+k}")
        def need_clamped(*tags):
            last = max(i for i, x in enumerate(d.q) if x in tags)
            n = min(len(d.q) - 1 - last, 15)
            p(f"s_waitcnt lgkmcnt({n})")
            d.q = d.q[len(d.q) - n:] if n else []
        for i in range(8):
            for j in range(7, i - 1, -1):
                tags = [x for x in (("A", i), ("B", j - i)) if x in d.q]
                if tags:
                    need_clamped(*tags)
                a = vr(acc + 4*j, 4)
                p(f"v_mfma_f32_16x16x32_bf16 {a}, {vr(A+4*i,4)}, {vr(B+4*(j-i),4)}, {a}")
                if j == 7:
                    LB(7 - i)
            LA(i)
        p(f"""
        s_sub_u32 s{sCNT}, s{sCNT}, 1
        s_cmp_lg_u32 s{sCNT}, 0
        s_cbranch_scc1 L_conv
        s_waitcnt lgkmcnt(0)
        v_and_b32 v1, 15, v{vLANE}
        v_lshrrev_b32 v2, 4, v{vLANE}
        v_lshlrev_b32 v2, 3, v2
        v_lshl_add_u32 v1, v1, 5, v2
        v_add_u32 v1, s{sT1}, v1
        """)
        for j in range(8):
            b = t + 2 * (j % 4)
            p(f"""
            v_cvt_pk_bf16_f32 v{b}, v{acc+4*j}, v{acc+4*j+1}
            v_cvt_pk_bf16_f32 v{b+1}, v{acc+4*j+2}, v{acc+4*j+3}
            ds_write_b64 v1, {vr(b,2)} offset:{480+512*j}
            """)
        p(f"""
        v_mov_b32 v1, {L_PERSIST}
        v_mov_b32 v2, 1
        s_waitcnt lgkmcnt(0)
        s_mov_b64 exec, 1
        ds_add_u32 v1, v2 offset:4
        s_mov_b64 exec, -1
        s_mov_b32 s{sCNT}, {self.c.spin}
        L_ssync:
        ds_read_b32 v2, v1 offset:4
        s_sub_u32 s{sCNT}, s{sCNT}, 1
        s_waitcnt lgkmcnt(0)
        v_readfirstlane_b32 s{sT2}, v2
        s_cmp_ge_u32 s{sT2}, 4
        s_cbranch_scc1 L_sgo
        s_cmp_lg_u32 s{sCNT}, 0
        s_cbranch_scc1 L_ssync
        L_sgo:
        """)
        self.stamp(10)
        for g in range(2):
            for c in range(4):
                p(f"ds_read_b64 {vr(B+8*g+2*c,2)}, v{t+28} offset:{c*UT_PITCH + g*512}")
        p(f"""
        s_mul_i32 s{sT0}, s{sT5}, {512*2560}
        s_lshl_b32 s{sT1}, s{sCH0}, 1
        s_add_u32 s{sT0}, s{sT0}, s{sT1}
        s_add_u32 s{sT0}, s{sT0}, 1280
        v_mul_u32_u24 v1, {4*2560}, v{vLANE}
        """)
        for g in range(2):
            p(f"s_waitcnt lgkmcnt({4*(1-g)})")
            y = B + 8 * g
            for i in range(4):
                sel = (sSEL_LO, sSEL_HI)[i % 2]
                b = A + 8 * g + 2 * i
                p(f"""
                v_perm_b32 v{b}, v{y+2+i//2}, v{y+i//2}, s{sel}
                v_perm_b32 v{b+1}, v{y+6+i//2}, v{y+4+i//2}, s{sel}
                """)
                if i == 2:
                    p(f"s_add_u32 s{sT0}, s{sT0}, 5120")
                p(f"buffer_store_dwordx2 {vr(b,2)}, v1, {sr(SOUT,4)}, s{sT0} offen offset:{2560*(i%2)}")
            if g == 0:
                p(f"s_add_u32 s{sT0}, s{sT0}, {256*2560-5120}")
        if self.c.stamps:
            p("s_waitcnt vmcnt(0)")
            self.stamp(11)
            self.stamps_out()
        p("s_endpgm")

    def build(self):
        p = self.p
        self.entry()
        self.frontA()
        self.frontB()
        p("s_branch L_pathB")
        self.frontA1()
        self.qsetup(0)
        self.attention(0)
        self.o_store(0)
        self.tailA()
        p.label("L_pathB")
        self.qsetup(1)
        self.attention(1)
        self.o_store(1)
        self.tailB()
        p.label("L_end")
        p("s_endpgm")
        lines, rep = hazard_pass_full(p.lines)
        self.report = rep
        head = f"""; MQA attention (32 heads sharing one K/V head) + output projection, concatenated with an S4D FFT-free convolution.
; @launch grid=(256,1,1) block=(512,1,1) lds={LDS_TOTAL}
.amdgcn_target "amdgcn-amd-amdhsa--gfx950"
.text
.globl {KNAME}
.p2align 8
.type {KNAME},@function
{KNAME}:
L_start:
"""
        body = "\n".join(("" if l.endswith(":") else "    ") + l for l in lines)
        tail = f"""
L_codeend:
.section .rodata,"a"
.p2align 6
.amdhsa_kernel {KNAME}
  .amdhsa_next_free_vgpr 256
  .amdhsa_next_free_sgpr 102
  .amdhsa_accum_offset 256
  .amdhsa_group_segment_fixed_size 0
  .amdhsa_kernarg_size 120
  .amdhsa_user_sgpr_count 2
  .amdhsa_user_sgpr_kernarg_segment_ptr 1
  .amdhsa_system_sgpr_workgroup_id_x 1
  .amdhsa_float_denorm_mode_32 3
.end_amdhsa_kernel
"""
        return head + body + tail


def generate(**kw):
    g = Gen(Cfg(**kw))
    s = g.build()
    return s, g.report

if __name__ == "__main__":
    import argparse, ast
    ap = argparse.ArgumentParser()
    ap.add_argument("-o", default="concat_heads__grouped_kv_mqa__ssm_conv_s4d__prompt.s")
    ap.add_argument("opts", nargs="*")
    a = ap.parse_args()
    kw = {}
    for o in a.opts:
        k, v = o.split("=", 1)
        kw[k] = ast.literal_eval(v)
    s, rep = generate(**kw)
    open(a.o, "w").write(s)
    print("wrote", a.o, len(s), "bytes;", len(rep), "hazard pads")
    for r in rep:
        print("  pad", r)
```
